```python
import torch

def _softmax(x, axis=-1):
    return torch.softmax(x, dim=axis)
def _gelu(x):
    return torch.nn.functional.gelu(x, approximate="tanh")
def _silu(x):
    return torch.nn.functional.silu(x)
def _sigmoid(x):
    return torch.sigmoid(x)
def _layernorm(x, axis=-1, eps=1e-5):
    m = x.mean(dim=axis, keepdim=True)
    v = x.var(dim=axis, keepdim=True, unbiased=False)
    return (x - m) / torch.sqrt(v + eps)
def _scatter_add(tgt, idx, src, axis=0):
    return tgt.clone().index_add_(axis, idx, src)
def _segment_sum(src, seg, n):
    out = torch.zeros((n,) + src.shape[1:], dtype=src.dtype)
    return out.index_add_(0, seg, src)
def _pad(x, pw):
    flat = tuple(v for pair in reversed(pw) for v in pair)
    return torch.nn.functional.pad(x, flat)

kernel_name = 'recurrent_scan__ssm_conv_s4__glu_gated_glu__prompt'

def setup_inputs():

    _w = (lambda a: (lambda t: t.to(torch.bfloat16) if t.is_floating_point() else t)(torch.as_tensor(a)))
    def _A_setup():
        B, L, D, N = 1, 2048, 512, 128
        A_re = -(lambda _x: torch.exp(torch.as_tensor(_x)))((lambda *s: torch.randn(*s, dtype=torch.bfloat16) * 6.4)(D, N))
        A_im = torch.pi * (lambda *s: torch.randn(*s, dtype=torch.bfloat16) * 0.05)(D, N)
        B_re = (lambda *s: torch.randn(*s, dtype=torch.bfloat16) * 0.1)(D, N)
        B_im = (lambda *s: torch.randn(*s, dtype=torch.bfloat16) * 0.1)(D, N)
        C_re = (lambda *s: torch.randn(*s, dtype=torch.bfloat16) * 0.1)(D, N)
        C_im = (lambda *s: torch.randn(*s, dtype=torch.bfloat16) * 0.1)(D, N)
        log_dt = (lambda *s: torch.randn(*s, dtype=torch.bfloat16) * 0.05)(D) * 0.5 - 4.0
        Dskip = (lambda *s: torch.randn(*s, dtype=torch.bfloat16) * 0.05)(D)
        return {
            "u": _w((lambda *s: torch.randn(*s, dtype=torch.bfloat16) * 0.05)(B, L, D)),
            "A_re": _w(A_re),
            "A_im": _w(A_im),
            "B_re": _w(B_re),
            "B_im": _w(B_im),
            "C_re": _w(C_re),
            "C_im": _w(C_im),
            "log_dt": _w(log_dt),
            "Dskip": _w(Dskip),
        }
    _A_in = _A_setup()

    def _B_setup():
        B, S, D, F = 1, 2048, 512, 1376
        return {
            "x": _w((lambda *s: torch.randn(*s, dtype=torch.bfloat16) * 0.05)(B, S, D)),
            "w_gate": _w((lambda *s: torch.randn(*s, dtype=torch.bfloat16) * 0.05)(D, F)),
            "w_up": _w((lambda *s: torch.randn(*s, dtype=torch.bfloat16) * 0.05)(D, F)),
            "w_down": _w((lambda *s: torch.randn(*s, dtype=torch.bfloat16) * 0.05)(F, D)),
        }
    _B_in = _B_setup()

    return {
        "A_u": _A_in["u"],
        "A_A_re": _A_in["A_re"],
        "A_A_im": _A_in["A_im"],
        "A_B_re": _A_in["B_re"],
        "A_B_im": _A_in["B_im"],
        "A_C_re": _A_in["C_re"],
        "A_C_im": _A_in["C_im"],
        "A_log_dt": _A_in["log_dt"],
        "A_Dskip": _A_in["Dskip"],
        "B_x": _B_in["x"],
        "B_w_gate": _B_in["w_gate"],
        "B_w_up": _B_in["w_up"],
        "B_w_down": _B_in["w_down"],
    }

def reference(A_u, A_A_re, A_A_im, A_B_re, A_B_im, A_C_re, A_C_im, A_log_dt, A_Dskip, B_x, B_w_gate, B_w_up, B_w_down):
    def _A_ref(u, A_re, A_im, B_re, B_im, C_re, C_im, log_dt, Dskip):
        Bsz, L, D = u.shape
        dt = torch.exp(log_dt)[:, None]
        A = A_re + 1j * A_im
        Bc = B_re + 1j * B_im
        Cc = C_re + 1j * C_im
        logdA = dt * A
        dB = dt * Bc
        l = (lambda x, dt: x.to(dt))(torch.arange(L), A_re.dtype)
        P = torch.exp(logdA[:, :, None] * l[None, None, :])
        K = torch.einsum("dn,dnl,dn->dl", Cc, P, dB).real
        L2 = 2 * L
        Kp = _pad(K, ((0, 0), (0, L)))
        up = (lambda x, *d: x.permute(*d))(u, 0, 2, 1)
        up = _pad(up, ((0, 0), (0, 0), (0, L)))
        Kf = (lambda x, axes=(-2,-1): torch.fft.rfft2(x.float(), dim=axes))(Kp[:, None, :], axes=(-2, -1))
        Uf = (lambda x, axes=(-2,-1): torch.fft.rfft2(x.float(), dim=axes))(up[:, :, None, :], axes=(-2, -1))
        Yf = Uf * Kf[None, :, :, :]
        y = (lambda x, s, axes=(-2,-1): torch.fft.irfft2(x, s=s, dim=axes).to(torch.bfloat16))(Yf, (1, L2), axes=(-2, -1))[:, :, 0, :L]
        y = (lambda x, *d: x.permute(*d))(y, 0, 2, 1) + u * Dskip[None, None, :]
        return y

    def _B_ref(x, w_gate, w_up, w_down):
        g = torch.einsum("bsd,df->bsf", x, w_gate)
        u = torch.einsum("bsd,df->bsf", x, w_up)
        h = _sigmoid(g) * u
        return torch.einsum("bsf,fd->bsd", h, w_down)

    x = A_u
    xn = _layernorm(x, axis=-1)
    s = _A_ref(xn, A_A_re, A_A_im, A_B_re, A_B_im, A_C_re, A_C_im, A_log_dt, A_Dskip)
    g = _silu(_B_ref(xn, B_w_gate, B_w_up, B_w_down))
    return x + s * g
```

```python
import sys, struct

NAME = "recurrent_scan__ssm_conv_s4__glu_gated_glu__prompt"

def f2u(x): return struct.unpack("<I", struct.pack("<f", x))[0]
def fl(x): return "0x%08x" % f2u(x)
LOG2E = 1.4426950408889634
INV2PI = 0.15915494309189535

class Asm:
    def __init__(self): self.lines = []
    def __call__(self, s):
        for l in s.strip("\n").split("\n"):
            l = l.strip()
            if not l: continue
            self.lines.append(l if l.endswith(":") else "    " + l)
    def c(self, s): self.lines.append("    ; " + s)
    def text(self): return "\n".join(self.lines) + "\n"

def vr(b, n): return f"v[{b}:{b+n-1}]"
def sr(b, n): return f"s[{b}:{b+n-1}]"

WS_H     = 0
H_BYTES  = 86 * 65536
WS_XT    = 6 << 20
WS_ST    = 8 << 20
WS_STATS = 10 << 20
WS_F2    = (10 << 20) + 65536
WS_F3    = WS_F2 + 16 * 128
STAMP_OFF = 200 << 20

SLOT   = 41088
L_GATE = 16384
L_UP   = 16384 + 12288 + 32
SSM0   = 3 * SLOT
EO_CH  = 8448
O_OFF  = 4160
L_EO   = SSM0
L_LN   = L_EO
XT_CH  = 4608
L_XT   = L_EO + 2 * EO_CH
L_MISC = L_XT + 2 * XT_CH
L_PT   = L_MISC
L_PART = L_PT + 4096
L_T    = L_PART + 6144
L_STAT = L_T + 3072
L_CNT  = L_STAT + 512
LDS_END = L_CNT + 64
assert LDS_END <= 163840, LDS_END

class Cfg:
    mapping = "H2"
    rotmul_m = 0; rotmul_n = 0
    stamps = False
    prefetch_code = True
    prio = True

def gen(cfg):
    a = Asm()
    st_n = [0]
    def stamp(idx):
        if cfg.stamps: a(f"s_memrealtime s[{70+2*idx}:{71+2*idx}]")

    pX, pAre, pAim, pBre, pBim, pCre, pCim, pLdt, pDsk, pWg, pWu, pWd, pOut, pDbg, pWs = 4, 6, 8, 10, 12, 14, 16, 18, 20, 24, 26, 28, 30, 32, 34
    sWave, sMb, sNb, sTb, sDb, sC0 = 52, 53, 54, 55, 56, 57
    sT0, sT1, sT2, sT3 = 58, 59, 60, 61
    SX, SW, SH = 36, 40, 44

    a("s_cmp_ge_u32 s2, 256")
    a("s_cbranch_scc1 L_exit")
    stamp(0)
    a("s_load_dwordx16 s[4:19], s[0:1], 0")
    a("s_load_dwordx16 s[20:35], s[0:1], 64")
    a("v_and_b32 v1, 63, v0")
    a("v_lshrrev_b32 v2, 6, v0")
    a("v_mov_b32 v3, 0")
    a(f"v_readfirstlane_b32 s{sWave}, v2")
    a(f"v_lshlrev_b32 v4, 2, v1")
    a(f"v_min_u32 v4, 60, v4")
    a(f"v_add_u32 v4, {L_CNT}, v4")
    a(f"ds_write_b32 v4, v3")
    a(f"s_and_b32 s{sT0}, s2, 7")
    a(f"s_lshr_b32 s{sT1}, s2, 3")
    if cfg.mapping == "H2":
        a(f"s_and_b32 s{sMb}, s{sT0}, 1")
        a(f"s_lshl_b32 s{sMb}, s{sMb}, 3")
        a(f"s_and_b32 s{sT2}, s{sT1}, 7")
        a(f"s_add_u32 s{sMb}, s{sMb}, s{sT2}")
        a(f"s_lshr_b32 s{sNb}, s{sT0}, 1")
        a(f"s_lshl_b32 s{sNb}, s{sNb}, 2")
        a(f"s_lshr_b32 s{sT2}, s{sT1}, 3")
        a(f"s_add_u32 s{sNb}, s{sNb}, s{sT2}")
    else:
        a(f"s_lshl_b32 s{sMb}, s{sT0}, 1")
        a(f"s_lshr_b32 s{sT2}, s{sT1}, 4")
        a(f"s_add_u32 s{sMb}, s{sMb}, s{sT2}")
        a(f"s_and_b32 s{sNb}, s{sT1}, 15")
    a(f"s_lshl_b32 s{sTb}, s{sT0}, 2")
    a(f"s_lshr_b32 s{sT2}, s{sT1}, 3")
    a(f"s_add_u32 s{sTb}, s{sTb}, s{sT2}")
    a(f"s_and_b32 s{sDb}, s{sT1}, 7")
    a(f"s_lshl_b32 s{sC0}, s{sT0}, 6")
    a(f"s_lshl_b32 s{sT2}, s{sT1}, 1")
    a(f"s_add_u32 s{sC0}, s{sC0}, s{sT2}")
    a(f"s_cmp_ge_u32 s{sWave}, 4")
    a("s_cbranch_scc1 L_gemm")

    a.c("---- SSM role ----")
    sTb8, sCh, sHv = 62, 63, 64
    a(f"s_lshl_b32 s{sTb8}, s{sMb}, 4")
    a(f"s_add_u32 s{sTb8}, s{sTb8}, s{sNb}")
    a(f"s_lshr_b32 s{sCh}, s{sWave}, 1")
    a(f"s_and_b32 s{sHv}, s{sWave}, 1")
    a(f"s_lshl_b32 s{sT0}, s{sTb8}, 2")
    a(f"s_add_u32 s{sT0}, s{sT0}, s{sWave}")
    a(f"s_lshl_b32 s{sT1}, s{sT0}, 11")
    a(f"v_lshl_add_u32 v5, v1, 4, s{sT1}")
    a(f"s_lshl_b32 s{sT1}, s{sC0}, 8")
    a(f"v_lshl_add_u32 v6, v0, 1, s{sT1}")
    a(f"s_add_u32 s{sT1}, s{sC0}, s{sCh}")
    a(f"s_lshl_b32 s{sT1}, s{sT1}, 1")
    a(f"v_mov_b32 v7, s{sT1}")
    a("s_waitcnt lgkmcnt(0)")
    a(f"global_load_dwordx4 v[8:11], v5, s[{pX}:{pX+1}]")
    a(f"global_load_dwordx4 v[12:15], v5, s[{pX}:{pX+1}] offset:1024")
    PRM = 40
    for i, p in enumerate((pAre, pAim, pBre, pBim, pCre, pCim)):
        a(f"global_load_short_d16_hi v{PRM+i}, v6, s[{p}:{p+1}]")
    a(f"global_load_short_d16_hi v{PRM+6}, v7, s[{pLdt}:{pLdt+1}]")
    a(f"global_load_short_d16_hi v{PRM+7}, v7, s[{pDsk}:{pDsk+1}]")
    nvm = 8
    if cfg.prefetch_code:
        a("s_getpc_b64 s[66:67]")
        a("L_pc:")
        a(f"s_sub_u32 s66, s66, L_pc-{NAME}_kernel")
        a("s_subb_u32 s67, s67, 0")
        a(f"s_lshr_b32 s{sT1}, s2, 3")
        a(f"s_lshl_b32 s{sT1}, s{sT1}, 2")
        a(f"s_add_u32 s{sT1}, s{sT1}, s{sWave}")
        a(f"s_lshl_b32 s{sT1}, s{sT1}, 7")
        a(f"s_min_u32 s{sT1}, s{sT1}, L_exit-{NAME}_kernel")
        a(f"v_mov_b32 v48, s{sT1}")
        a("global_load_dword v49, v48, s[66:67]")
        nvm = 9
    a("s_barrier")
    vP, vQ = 50, 51
    a("v_and_b32 v52, 31, v1")
    a("v_lshlrev_b32 v51, 3, v52")
    a("v_cvt_f32_u32 v51, v51")
    a("v_lshlrev_b32 v53, 8, v52")
    a("v_subrev_u32 v53, 3072, v53")
    a("v_lshlrev_b32 v54, 7, v52")
    a("v_and_b32 v54, 0x100, v54")
    a("v_and_b32 v55, 1, v52")
    a("v_lshl_add_u32 v54, v55, 2, v54")
    a("v_add_u32 v54, 512, v54")
    a("v_cmp_gt_u32 vcc, 16, v52")
    a("v_lshlrev_b32 v55, 1, v52")
    a("v_add_u32 v55, 240, v55")
    a("v_cndmask_b32 v53, v53, v54, vcc")
    a("v_cmp_gt_u32 vcc, 12, v52")
    a("s_nop 1")
    a("v_cndmask_b32 v53, v53, v55, vcc")
    a("v_cmp_gt_u32 vcc, 8, v52")
    a("s_nop 1")
    a("v_cndmask_b32 v53, v53, v52, vcc")
    a("v_cvt_f32_u32 v50, v53")
    a(f"s_mul_i32 s{sT1}, s{sWave}, 2176")
    a(f"s_sub_u32 s{sT1}, {L_LN + 6*1088}, s{sT1}")
    a(f"v_lshl_add_u32 v56, v1, 4, s{sT1}")
    a("v_bfe_u32 v57, v1, 2, 2")
    a("v_mul_u32_u24 v57, 1088, v57")
    a("v_lshrrev_b32 v58, 4, v1")
    a("v_lshl_add_u32 v57, v58, 5, v57")
    a("v_and_b32 v58, 3, v1")
    a("v_lshl_add_u32 v57, v58, 3, v57")
    a(f"s_lshl_b32 s{sT1}, s{sWave}, 8")
    a(f"s_add_u32 s{sT1}, s{sT1}, {L_LN}")
    a(f"v_add_u32 v57, s{sT1}, v57")
    a(f"s_waitcnt vmcnt({nvm})")
    FA, FB = 16, 24
    for i in range(4):
        a(f"v_lshlrev_b32 v{FA+2*i}, 16, v{8+i}")
        a(f"v_and_b32 v{FA+2*i+1}, 0xffff0000, v{8+i}")
        a(f"v_lshlrev_b32 v{FB+2*i}, 16, v{12+i}")
        a(f"v_and_b32 v{FB+2*i+1}, 0xffff0000, v{12+i}")
    a(f"v_add_f32 v8, v{FA}, v{FA+1}")
    a(f"v_add_f32 v9, v{FB}, v{FB+1}")
    for i in range(2, 8):
        a(f"v_add_f32 v8, v8, v{FA+i}")
        a(f"v_add_f32 v9, v9, v{FB+i}")
    def reduce2(x, y):
        a("s_nop 0")
        for r, m in (("row_ror:8", "0xf"), ("row_ror:4", "0xf"), ("row_ror:2", "0xf"), ("row_ror:1", "0xf"), ("row_bcast:15", "0xa"), ("row_bcast:31", "0xc")):
            a(f"v_add_f32_dpp v{x}, v{x}, v{x} {r} row_mask:{m} bank_mask:0xf")
            a(f"v_add_f32_dpp v{y}, v{y}, v{y} {r} row_mask:{m} bank_mask:0xf")
            a("s_nop 0")
        a(f"v_mul_f32 v{x}, {fl(1/512)}, v{x}")
        a(f"v_mul_f32 v{y}, {fl(1/512)}, v{y}")
    reduce2(8, 9)
    a("s_nop 0")
    a(f"v_readlane_b32 s{sT0}, v8, 63")
    a(f"v_readlane_b32 s{sT1}, v9, 63")
    a("s_nop 1")
    for i in range(8):
        a(f"v_subrev_f32 v12, s{sT0}, v{FA+i}")
        a(f"v_subrev_f32 v13, s{sT1}, v{FB+i}")
        if i == 0:
            a("v_mul_f32 v10, v12, v12")
            a("v_mul_f32 v11, v13, v13")
        else:
            a("v_fmac_f32 v10, v12, v12")
            a("v_fmac_f32 v11, v13, v13")
    reduce2(10, 11)
    a("v_cvt_pk_bf16_f32 v12, v10, v11")
    a("v_cvt_pk_bf16_f32 v13, v8, v9")
    a("v_lshlrev_b32 v10, 16, v12")
    a("v_and_b32 v11, 0xffff0000, v12")
    a(f"v_add_f32 v10, {fl(1e-5)}, v10")
    a(f"v_add_f32 v11, {fl(1e-5)}, v11")
    a("v_cvt_pk_bf16_f32 v12, v10, v11")
    a("v_lshlrev_b32 v10, 16, v12")
    a("v_and_b32 v11, 0xffff0000, v12")
    a("v_sqrt_f32 v10, v10")
    a("v_sqrt_f32 v11, v11")
    a("v_lshlrev_b32 v8, 16, v13")
    a("v_cvt_pk_bf16_f32 v12, v10, v11")
    a("v_and_b32 v9, 0xffff0000, v13")
    a("v_lshlrev_b32 v10, 16, v12")
    a("v_and_b32 v11, 0xffff0000, v12")
    a("v_and_b32 v14, 0xffff, v13")
    a("v_or_b32 v14, v14, v10")
    a("v_lshrrev_b32 v15, 16, v13")
    a("v_or_b32 v15, v15, v11")
    a("v_rcp_f32 v10, v10")
    a("v_rcp_f32 v11, v11")
    a(f"s_lshl_b32 s{sT2}, s{sTb8}, 5")
    a("v_mul_f32 v8, v8, v10")
    a("v_mul_f32 v9, v9, v11")
    a(f"v_readlane_b32 s{sT0}, v10, 63")
    a(f"v_readlane_b32 s{sT1}, v11, 63")
    a(f"v_readlane_b32 s65, v8, 63")
    a(f"v_readlane_b32 s66, v9, 63")
    a(f"s_lshl_b32 s{sT3}, s{sWave}, 3")
    a(f"s_add_u32 s{sT2}, s{sT2}, s{sT3}")
    a(f"s_add_u32 s{sT2}, s{sT2}, {WS_STATS}")
    a("v_mov_b32 v8, s65")
    a("v_mov_b32 v9, s66")
    for i in range(8):
        a(f"v_fma_f32 v{FA+i}, v{FA+i}, s{sT0}, -v8")
        a(f"v_fma_f32 v{FB+i}, v{FB+i}, s{sT1}, -v9")
    for i in range(4):
        a(f"v_cvt_pk_bf16_f32 v{32+i}, v{FA+2*i}, v{FA+2*i+1}")
        a(f"v_cvt_pk_bf16_f32 v{36+i}, v{FB+2*i}, v{FB+2*i+1}")
    a("ds_write_b128 v56, v[32:35] offset:1088")
    a("ds_write_b128 v56, v[36:39]")
    a(f"v_mov_b32 v12, s{sT2}")
    a(f"v_mov_b32 v13, {L_CNT}")
    a("v_mov_b32 v10, 1")
    a("s_mov_b32 exec_lo, 0")
    a("s_brev_b32 exec_hi, 1")
    a("ds_add_u32 v13, v10")
    a(f"global_store_dwordx2 v12, v[14:15], s[{pWs}:{pWs+1}] sc1")
    a(f"s_lshl_b32 s{sT0}, s{sWave}, 8")
    a(f"s_add_u32 s{sT0}, s{sT0}, s2")
    a(f"s_cmp_ge_u32 s{sT0}, 24")
    a("s_cbranch_scc1 L_noclr")
    a(f"s_lshl_b32 s{sT0}, s2, 7")
    a(f"s_add_u32 s{sT0}, s{sT0}, {WS_F2}")
    a(f"v_mov_b32 v12, s{sT0}")
    a(f"global_store_dword v12, v3, s[{pWs}:{pWs+1}] sc1")
    a("L_noclr:")
    a("s_mov_b64 exec, -1")
    a("s_waitcnt vmcnt(2)")
    a(f"v_mul_f32 v{PRM+6}, {fl(LOG2E)}, v{PRM+6}")
    a(f"v_exp_f32 v{PRM+6}, v{PRM+6}")
    a(f"s_lshl_b32 s{sT0}, s{sWave}, 10")
    a(f"s_add_u32 s{sT0}, s{sT0}, {L_PT}")
    a(f"v_cvt_pk_bf16_f32 v{PRM+6}, v{PRM+6}, v{PRM+6}")
    a(f"v_lshl_add_u32 v12, v1, 4, s{sT0}")
    a(f"v_lshlrev_b32 v{PRM+6}, 16, v{PRM+6}")
    a(f"v_mul_f32 v16, v{PRM+6}, v{PRM}")
    a(f"v_mul_f32 v17, v{PRM+6}, v{PRM+1}")
    a(f"v_mul_f32 v{PRM+2}, v{PRM+6}, v{PRM+2}")
    a(f"v_mul_f32 v{PRM+3}, v{PRM+6}, v{PRM+3}")
    a(f"v_mul_f32 v16, {fl(LOG2E)}, v16")
    a(f"v_mul_f32 v17, {fl(INV2PI)}, v17")
    a(f"v_mul_f32 v18, v{PRM+4}, v{PRM+2}")
    a(f"v_mul_f32 v19, v{PRM+4}, v{PRM+3}")
    a(f"v_fma_f32 v18, -v{PRM+5}, v{PRM+3}, v18")
    a(f"v_fmac_f32 v19, v{PRM+5}, v{PRM+2}")
    a("ds_write_b128 v12, v[16:19]")
    vDsk = PRM + 7
    a("v_lshrrev_b32 v58, 5, v1")
    a(f"v_lshl_add_u32 v58, v58, 6, s{sT0}")
    KACC = 64
    for i in range(16): a(f"v_mov_b32 v{KACC+i}, 0")
    a(f"s_mov_b32 s{sT1}, 0x100000")
    a("L_lnw:")
    a("ds_read_b32 v10, v13")
    a(f"s_sub_u32 s{sT1}, s{sT1}, 1")
    a("s_waitcnt lgkmcnt(0)")
    a(f"v_readfirstlane_b32 s{sT0}, v10")
    a(f"s_cmp_eq_u32 s{sT1}, 0")
    a("s_cbranch_scc1 L_lnd")
    a(f"s_cmp_lt_u32 s{sT0}, 4")
    a("s_cbranch_scc1 L_lnw")
    a("L_lnd:")
    a("ds_read_b64_tr_b16 v[16:17], v57")
    a("ds_read_b64_tr_b16 v[18:19], v57 offset:4352")
    a("ds_read_b64_tr_b16 v[20:21], v57 offset:128")
    a("ds_read_b64_tr_b16 v[22:23], v57 offset:4480")
    a(f"s_lshl_b32 s{sT0}, s{sTb8}, 13")
    a(f"s_lshl_b32 s{sT1}, s{sWave}, 11")
    a(f"s_add_u32 s{sT0}, s{sT0}, s{sT1}")
    a(f"s_add_u32 s{sT0}, s{sT0}, {WS_XT}")
    a(f"v_lshl_add_u32 v12, v1, 4, s{sT0}")
    a("s_waitcnt lgkmcnt(2)")
    a(f"global_store_dwordx4 v12, v[16:19], s[{pWs}:{pWs+1}] sc1")
    a("s_waitcnt lgkmcnt(0)")
    a(f"global_store_dwordx4 v12, v[20:23], s[{pWs}:{pWs+1}] offset:1024 sc1")
    stamp(1)
    sIt = 65
    a(f"s_mov_b32 s{sIt}, 0")
    PR = 80
    FAq, FBq = 96, 100
    a("L_kg:")
    for i in range(4): a(f"ds_read_b128 {vr(PR+4*i,4)}, v58 offset:{16*i}")
    a(f"s_bitcmp1_b32 s{sIt}, 0")
    a("s_cbranch_scc1 L_kg_odd")
    a("s_barrier")
    a("s_branch L_kg_go")
    a("L_kg_odd:")
    a(f"s_cmp_lg_u32 s{sIt}, 1")
    a("s_cbranch_scc1 L_kg_go")
    a("s_waitcnt vmcnt(0)")
    a("s_mov_b64 exec, 1")
    a("v_mov_b32 v10, 1")
    a("ds_add_rtn_u32 v11, v13, v10 offset:4")
    a("s_waitcnt lgkmcnt(0)")
    a(f"v_readfirstlane_b32 s{sT0}, v11")
    a("s_nop 1")
    a(f"s_cmp_lg_u32 s{sT0}, 3")
    a("s_cbranch_scc1 L_kg_nf")
    a(f"s_and_b32 s{sT0}, s2, 0xfc")
    a(f"v_mov_b32 v11, s{sT0}")
    a(f"global_atomic_add v11, v10, s[{pDbg}:{pDbg+1}] sc1")
    a("L_kg_nf:")
    a("s_mov_b64 exec, -1")
    a("L_kg_go:")
    a("v_add_u32 v58, 128, v58")
    for i in range(4):
        A_, W_, CR, CI = PR+4*i, PR+4*i+1, PR+4*i+2, PR+4*i+3
        a(f"s_waitcnt lgkmcnt({3-i})")
        a(f"v_mul_f32 v16, v{W_}, v{vP}")
        a(f"v_mul_f32 v17, v{W_}, v{vQ}")
        a(f"v_mul_f32 v18, v{A_}, v{vP}")
        a(f"v_mul_f32 v19, v{A_}, v{vQ}")
        a("v_fract_f32 v16, v16")
        a("v_fract_f32 v17, v17")
        a("v_exp_f32 v18, v18")
        a("v_exp_f32 v19, v19")
        a("v_cos_f32 v20, v16")
        a("v_sin_f32 v21, v16")
        a("v_cos_f32 v22, v17")
        a("v_sin_f32 v23, v17")
        a(f"v_mul_f32 v24, v18, v{CR}")
        a(f"v_mul_f32 v25, v18, v{CI}")
        a("v_mul_f32 v22, v19, v22")
        a("v_mul_f32 v23, v19, v23")
        a("v_mul_f32 v26, v24, v20")
        a("v_mul_f32 v27, v24, v21")
        a("v_fma_f32 v26, -v25, v21, v26")
        a("v_fma_f32 v27, -v25, v20, -v27")
        a(f"v_cvt_pk_bf16_f32 v{FBq+i}, v22, v23")
        a(f"v_cvt_pk_bf16_f32 v{FAq+i}, v26, v27")
    a(f"s_add_u32 s{sIt}, s{sIt}, 1")
    a(f"s_cmp_lt_u32 s{sIt}, 8")
    a(f"v_mfma_f32_32x32x16_bf16 {vr(KACC,16)}, {vr(FAq,4)}, {vr(FBq,4)}, {vr(KACC,16)}")
    a("s_cbranch_scc1 L_kg")
    stamp(2)
    a(f"s_mul_i32 s{sT0}, s{sCh}, 3072")
    a(f"s_add_u32 s{sT0}, s{sT0}, {L_PART}")
    a(f"v_lshl_add_u32 v12, v1, 4, s{sT0}")
    sEO, sTT, sXTb = 66, 67, 68
    a(f"s_mul_i32 s{sEO}, s{sCh}, {EO_CH}")
    a(f"s_add_u32 s{sEO}, s{sEO}, {L_EO}")
    a(f"s_mul_i32 s{sTT}, s{sCh}, 1536")
    a(f"s_add_u32 s{sTT}, s{sTT}, {L_T}")
    a(f"s_mul_i32 s{sXTb}, s{sCh}, {XT_CH}")
    a(f"s_add_u32 s{sXTb}, s{sXTb}, {L_XT}")
    a(f"s_cmp_eq_u32 s{sHv}, 0")
    a("s_nop 7")
    a("s_cbranch_scc1 L_t0")
    for g in range(3): a(f"ds_write_b128 v12, {vr(KACC+4*g,4)} offset:{1024*g}")
    a("s_waitcnt lgkmcnt(0)")
    a("s_barrier")
    a("v_mov_b32 v16, 0")
    a("v_mov_b32 v17, 0")
    a(f"v_lshl_add_u32 v14, v1, 3, s{sXTb}")
    a("ds_write_b64 v14, v[16:17]")
    a("v_and_b32 v14, 3, v1")
    a(f"v_lshl_add_u32 v14, v14, 3, s{sEO}")
    a("ds_write_b64 v14, v[16:17]")
    a(f"ds_write_b64 v14, v[16:17] offset:{O_OFF}")
    a("s_branch L_t1")
    a("L_t0:")
    a("s_barrier")
    for g in range(3): a(f"ds_read_b128 {vr(16+4*g,4)}, v12 offset:{1024*g}")
    a("v_lshrrev_b32 v28, 5, v1")
    a("v_lshlrev_b32 v29, 4, v52")
    a(f"v_lshl_add_u32 v29, v28, 3, v29")
    a(f"v_add_u32 v29, s{sTT}, v29")
    a("v_sub_u32 v30, 3, v28")
    a("v_lshlrev_b32 v30, v30, v52")
    a("v_lshl_add_u32 v30, v28, 8, v30")
    a(f"v_add_u32 v30, s{sTT}, v30")
    a("v_mul_u32_u24 v31, 124, v28")
    a("v_add_u32 v31, v30, v31")
    a("v_lshlrev_b32 v32, 1, v52")
    a("v_lshl_add_u32 v32, v28, 8, v32")
    a(f"v_add_u32 v32, s{sTT}, v32")
    a("s_waitcnt lgkmcnt(0)")
    for i in range(12): a(f"v_add_f32 v{16+i}, v{16+i}, v{KACC+i}")
    for i in range(6): a(f"v_cvt_pk_bf16_f32 v{16+i}, v{16+2*i}, v{17+2*i}")
    a("ds_write_b64 v29, v[16:17]")
    a("ds_write_b32 v30, v18 offset:512")
    a("ds_write_b32 v31, v19 offset:516")
    a("ds_write_b16 v32, v20 offset:1024")
    a("ds_write_b16_d16_hi v32, v20 offset:1088")
    a("ds_write_b16 v32, v21 offset:1152")
    a("ds_write_b16_d16_hi v32, v21 offset:1216")
    a("L_t1:")
    a(f"s_lshl_b32 s{sT0}, s{sHv}, 6")
    a(f"v_add_u32 v33, s{sT0}, v1")
    a("v_lshlrev_b32 v34, 4, v33")
    a("v_cvt_f32_u32 v34, v34")
    a("v_lshrrev_b32 v35, 23, v34")
    a("v_max_u32 v35, 134, v35")
    a("v_subrev_u32 v35, 134, v35")
    a("v_sub_u32 v36, 127, v35")
    a("v_lshlrev_b32 v36, 23, v36")
    a("v_lshlrev_b32 v35, 7, v35")
    a("v_add_u32 v35, 0x4b000000, v35")
    a("v_fmac_f32 v35, v34, v36")
    a(f"s_add_u32 s{sT1}, s{sTT}, 0x6a000000")
    a(f"v_lshl_add_u32 v37, v33, 5, s{sEO}")
    a("s_waitcnt lgkmcnt(0)")
    a("s_barrier")
    G = 80
    for e in range(17):
        if e == 0: a(f"v_lshl_add_u32 v38, v35, 1, s{sT1}")
        else:
            a(f"v_fmamk_f32 v38, v36, {fl(float(e))}, v35")
            a(f"v_lshl_add_u32 v38, v38, 1, s{sT1}")
        a(f"ds_read_u16{'_d16_hi' if e & 1 else ''} v{G+e}, v38")
        if e == 13: a("s_waitcnt lgkmcnt(8)")
    a("s_waitcnt lgkmcnt(0)")
    for k in range(8):
        a(f"v_or_b32 v{100+k}, v{G+2*k}, v{G+2*k+1}")
        a(f"v_alignbit_b32 v{108+k}, v{G+2*k+2}, v{G+2*k+1}, 16")
    a("ds_write_b128 v37, v[100:103] offset:32")
    a("ds_write_b128 v37, v[104:107] offset:48")
    a(f"ds_write_b128 v37, v[108:111] offset:{O_OFF+32}")
    a(f"ds_write_b128 v37, v[112:115] offset:{O_OFF+48}")
    a("v_cmp_eq_u32 vcc, 0, v33")
    a(f"s_and_saveexec_b64 s[{sT2}:{sT2+1}], vcc")
    a(f"ds_write_b16 v37, v{G} offset:{O_OFF+30}")
    a("s_mov_b64 exec, -1")
    a("v_lshrrev_b32 v16, 1, v1")
    a("v_and_b32 v17, 1, v1")
    a(f"s_lshl_b32 s{sT0}, s{sWave}, 19")
    a(f"s_lshl_b32 s{sT1}, s{sC0}, 4")
    a(f"s_add_u32 s{sT0}, s{sT0}, s{sT1}")
    a(f"s_add_u32 s{sT0}, s{sT0}, {WS_XT}")
    a(f"v_lshl_add_u32 v18, v16, 13, s{sT0}")
    a("v_lshl_add_u32 v18, v17, 4, v18")
    a("v_add_u32 v19, 0x40000, v18")
    a(f"s_lshl_b32 s{sT0}, s{sWave}, 10")
    a(f"s_add_u32 s{sT0}, s{sT0}, {L_XT + 512}")
    a(f"v_mul_u32_u24 v20, {XT_CH}, v17")
    a(f"v_lshl_add_u32 v20, v16, 4, v20")
    a(f"v_add_u32 v20, s{sT0}, v20")
    a(f"s_lshl_b32 s{sT0}, s{sWave}, 7")
    a(f"v_lshl_add_u32 v21, v52, 2, s{sT0}")
    a(f"s_lshl_b32 s{sT0}, s{sMb}, 9")
    a(f"s_add_u32 s{sT0}, s{sT0}, {WS_STATS}")
    a(f"v_add_u32 v22, s{sT0}, v21")
    a(f"v_add_u32 v21, {L_STAT}, v21")
    a("v_lshlrev_b32 v23, 2, v1")
    a("s_waitcnt lgkmcnt(0)")
    a("s_barrier")
    stamp(3)
    def poll(lbl, vaddr, ptr, cmpop, target, off=0, sleep=2):
        a(f"s_mov_b32 s{sT1}, 0x20000")
        a(f"{lbl}:")
        a(f"global_load_dword v24, v{vaddr}, s[{ptr}:{ptr+1}] offset:{off} sc1")
        a(f"s_sub_u32 s{sT1}, s{sT1}, 1")
        a("s_waitcnt vmcnt(0)")
        a(f"v_cmp_{cmpop}_u32 vcc, {target}, v24")
        a(f"s_cmp_eq_u32 s{sT1}, 0")
        a(f"s_cbranch_scc1 {lbl}_d")
        a(f"s_cbranch_vccz {lbl}_d")
        a(f"s_sleep {sleep}")
        a(f"s_branch {lbl}")
        a(f"{lbl}_d:")
    poll("L_p1", 23, pDbg, "ne", 4)
    stamp(4)
    a(f"global_load_dwordx4 v[24:27], v18, s[{pWs}:{pWs+1}] sc1")
    a(f"global_load_dwordx4 v[28:31], v19, s[{pWs}:{pWs+1}] sc1")
    a(f"global_load_dword v32, v22, s[{pWs}:{pWs+1}] sc1")
    CA, CB_, CY = 64, 96, 128
    a("v_and_b32 v33, 15, v1")
    a("v_lshrrev_b32 v34, 4, v1")
    a("v_add_u32 v35, 1, v33")
    a("v_lshrrev_b32 v36, 1, v35")
    a("v_lshl_add_u32 v36, v34, 2, v36")
    a("v_and_b32 v35, 1, v35")
    a(f"v_mul_u32_u24 v35, {O_OFF}, v35")
    a("v_lshl_add_u32 v36, v36, 2, v35")
    a(f"s_lshl_b32 s{sT0}, s{sHv}, 8")
    a(f"s_add_u32 s{sT1}, s{sT0}, s{sEO}")
    a(f"v_add_u32 v40, s{sT1}, v36")
    for k in range(1, 4): a(f"v_add_u32 v{40+k}, {1024*k}, v40")
    a("v_lshlrev_b32 v44, 1, v33")
    a("v_sub_u32 v44, v44, v34")
    a(f"s_sub_u32 s{sT1}, s{sXTb}, s{sT0}")
    a(f"s_add_u32 s{sT1}, s{sT1}, {512+16}")
    a(f"v_lshl_add_u32 v44, v44, 4, s{sT1}")
    for i in range(32): a(f"v_mov_b32 v{CY+i}, 0")
    a("s_barrier")
    a("s_waitcnt vmcnt(0)")
    a("ds_write_b128 v20, v[24:27]")
    a("ds_write_b128 v20, v[28:31] offset:512")
    a("ds_write_b32 v21, v32")
    a("s_waitcnt lgkmcnt(0)")
    a("s_barrier")
    stamp(5)
    def rdA(q):
        o = 128 * (q & 1)
        a(f"ds_read2_b32 {vr(CA+4*q,2)}, v{40+(q>>1)} offset0:{o} offset1:{o+1}")
        a(f"ds_read2_b32 {vr(CA+4*q+2,2)}, v{40+(q>>1)} offset0:{o+2} offset1:{o+3}")
    def rdB(j):
        a(f"ds_read_b128 {vr(CB_+4*j,4)}, v44 offset:{512*j}")
    for q in range(8):
        if q >= 4: a("s_waitcnt lgkmcnt(9)")
        rdA(q); rdB(7-q)
    a(f"s_mov_b32 s{sIt}, 0")
    a("L_cv:")
    for k in range(4): a(f"v_add_u32 v{40+k}, 64, v{40+k}")
    a("v_subrev_u32 v44, 64, v44")
    for q in range(8):
        for j in range(7-q, -1, -1):
            if q == 0:
                a(f"s_waitcnt lgkmcnt({min(15, 3*j)})")
            i = q + j
            a(f"v_mfma_f32_16x16x32_bf16 {vr(CY+4*i,4)}, {vr(CA+4*q,4)}, {vr(CB_+4*j,4)}, {vr(CY+4*i,4)}")
        if q >= 4: a("s_waitcnt lgkmcnt(9)")
        rdA(q); rdB(7-q)
    a(f"s_add_u32 s{sIt}, s{sIt}, 1")
    a(f"s_cmp_lt_u32 s{sIt}, 4")
    a("s_cbranch_scc1 L_cv")
    stamp(6)
    XO = (0, 1024, 6144, 7168)
    a(f"s_cmp_eq_u32 s{sCh}, 0")
    a(f"s_cselect_b32 s{sT2}, 0, {SLOT + L_GATE + 4096 - L_MISC & 0xffffffff}")
    a(f"s_cselect_b32 s{sT3}, 0, {L_UP - L_GATE - 2048}")
    a(f"s_add_u32 s{sT2}, s{sT2}, {L_MISC}")
    a(f"s_add_u32 s{sT3}, s{sT3}, 2048")
    a(f"s_add_u32 s{sT3}, s{sT3}, s{sT2}")
    a(f"s_cmp_eq_u32 s{sHv}, 0")
    a(f"s_cselect_b32 s{sT0}, s{sT2}, s{sT3}")
    a(f"s_cselect_b32 s{sT1}, s{sT3}, s{sT2}")
    a(f"v_lshl_add_u32 v16, v1, 4, s{sT0}")
    a(f"v_lshl_add_u32 v17, v1, 4, s{sT1}")
    a(f"s_lshl_b32 s{sT0}, s{sCh}, 2")
    a(f"s_add_u32 s{sT0}, s{sT0}, {L_CNT+8}")
    a(f"v_mov_b32 v18, s{sT0}")
    a("v_mov_b32 v10, 1")
    a(f"s_cmp_eq_u32 s{sHv}, 0")
    a("s_waitcnt lgkmcnt(0)")
    a("s_cbranch_scc1 L_x0")
    for k in range(4): a(f"ds_write_b128 v16, {vr(CY+4*k,4)} offset:{XO[k]}")
    a("s_mov_b64 exec, 1")
    a("ds_add_u32 v18, v10")
    a("s_mov_b64 exec, -1")
    a("s_waitcnt lgkmcnt(0)")
    for k in range(16): a(f"v_mov_b32 v{CY+k}, v{CY+16+k}")
    a("s_branch L_x1")
    a("L_x0:")
    for k in range(4): a(f"ds_write_b128 v16, {vr(CY+16+4*k,4)} offset:{XO[k]}")
    a("s_mov_b64 exec, 1")
    a("ds_add_u32 v18, v10")
    a("s_mov_b64 exec, -1")
    a("L_x1:")
    a("v_lshrrev_b32 v19, 1, v34")
    a("v_lshl_add_u32 v19, v33, 1, v19")
    a("v_and_b32 v20, 1, v34")
    a("v_xor_b32 v20, 1, v20")
    a("v_lshlrev_b32 v20, 3, v20")
    a("v_lshl_add_u32 v19, v19, 4, v20")
    a(f"s_lshl_b32 s{sT0}, s{sHv}, 11")
    a(f"s_add_u32 s{sT1}, s{sT0}, s{sXTb}")
    a(f"v_add_u32 v19, s{sT1}, v19")
    for k in range(4): a(f"ds_read_b64 {vr(64+2*k,2)}, v19 offset:{512+512*k}")
    a(f"s_add_u32 s{sT1}, s{sC0}, s{sCh}")
    a(f"s_lshl_b32 s{sT1}, s{sT1}, 12")
    a(f"s_add_u32 s{sT1}, s{sT1}, s{sT0}")
    a(f"s_add_u32 s{sT1}, s{sT1}, {WS_ST}")
    a(f"v_lshl_add_u32 v21, v33, 5, s{sT1}")
    a("v_lshl_add_u32 v21, v34, 3, v21")
    a(f"s_mov_b32 s{sT1}, 0x100000")
    a("L_xw:")
    a("ds_read_b32 v11, v18")
    a(f"s_sub_u32 s{sT1}, s{sT1}, 1")
    a("s_waitcnt lgkmcnt(0)")
    a(f"v_readfirstlane_b32 s{sT0}, v11")
    a(f"s_cmp_eq_u32 s{sT1}, 0")
    a("s_cbranch_scc1 L_xd")
    a(f"s_cmp_lt_u32 s{sT0}, 2")
    a("s_cbranch_scc1 L_xw")
    a("L_xd:")
    for k in range(4): a(f"ds_read_b128 {vr(80+4*k,4)}, v17 offset:{XO[k]}")
    for k in range(4):
        a(f"s_waitcnt lgkmcnt({3-k})")
        a(f"v_and_b32 v24, 0xffff0000, v{64+2*k+1}")
        a(f"v_lshlrev_b32 v25, 16, v{64+2*k+1}")
        a(f"v_and_b32 v26, 0xffff0000, v{64+2*k}")
        a(f"v_lshlrev_b32 v27, 16, v{64+2*k}")
        for j in range(4): a(f"v_add_f32 v{80+4*k+j}, v{80+4*k+j}, v{CY+4*k+j}")
        for j in range(4): a(f"v_fmac_f32 v{80+4*k+j}, v{24+j}, v{vDsk}")
        a(f"v_cvt_pk_bf16_f32 v{96+2*k}, v{80+4*k}, v{80+4*k+1}")
        a(f"v_cvt_pk_bf16_f32 v{97+2*k}, v{80+4*k+2}, v{80+4*k+3}")
        a(f"global_store_dwordx2 v21, {vr(96+2*k,2)}, s[{pWs}:{pWs+1}] offset:{512*k} sc1")
    a(f"s_and_b32 s{sT0}, s2, 7")
    a(f"s_lshl_b32 s{sT0}, s{sT0}, 7")
    a(f"s_add_u32 s{sT0}, s{sT0}, {WS_F3}")
    a(f"v_mov_b32 v11, s{sT0}")
    a(f"s_lshl_b32 s{sT0}, s{sDb}, 7")
    a(f"s_add_u32 s{sT0}, s{sT0}, {WS_F3}")
    a(f"v_mov_b32 v23, s{sT0}")
    a("v_lshrrev_b32 v16, 3, v1")
    a("v_and_b32 v17, 7, v1")
    a(f"s_lshl_b32 s{sT0}, s{sDb}, 2")
    a(f"s_add_u32 s{sT0}, s{sT0}, s{sWave}")
    a(f"s_lshl_b32 s{sT0}, s{sT0}, 16")
    a(f"s_lshl_b32 s{sT1}, s{sTb}, 7")
    a(f"s_add_u32 s{sT0}, s{sT0}, s{sT1}")
    a(f"s_add_u32 s{sT0}, s{sT0}, {WS_ST}")
    a(f"v_lshl_add_u32 v18, v16, 12, s{sT0}")
    a("v_lshl_add_u32 v18, v17, 4, v18")
    a("v_add_u32 v19, 0x8000, v18")
    a(f"s_mul_i32 s{sT0}, s{sHv}, {16*S_PITCH}")
    a(f"s_add_u32 s{sT0}, s{sT0}, s{sEO}")
    a(f"v_mul_u32_u24 v20, {S_PITCH}, v16")
    a("v_lshl_add_u32 v20, v17, 4, v20")
    a(f"v_add_u32 v20, s{sT0}, v20")
    a("s_waitcnt vmcnt(0)")
    a("s_mov_b64 exec, 1")
    a(f"global_atomic_add v11, v10, s[{pWs}:{pWs+1}] sc1")
    a("s_mov_b64 exec, -1")
    stamp(7)
    xload(a, pX, sTb, sDb, sWave, sT0, sT1)
    poll("L_p3", 23, pWs, "gt", 128, sleep=4)
    stamp(8)
    a(f"global_load_dwordx4 v[24:27], v18, s[{pWs}:{pWs+1}] sc1")
    a(f"global_load_dwordx4 v[28:31], v19, s[{pWs}:{pWs+1}] sc1")
    a("s_waitcnt vmcnt(1)")
    a("ds_write_b128 v20, v[24:27]")
    a("s_waitcnt vmcnt(0)")
    a(f"ds_write_b128 v20, v[28:31] offset:{8*S_PITCH}")
    a("s_branch L_fin")

    a.c("---- GEMM role ----")
    a("L_gemm:")
    sG, sWm, sWn, sKx, sKw, sSt, sMx, sMw, sDl, sIt2 = 62, 63, 64, 65, 66, 67, 68, 69, 48, 49
    VO = 8
    SEL, CS, F0, F1, ACC = 20, 24, 36, 56, 80
    if cfg.prio: a("s_setprio 2")
    a(f"s_sub_u32 s{sG}, s{sWave}, 4")
    a(f"s_lshr_b32 s{sWm}, s{sG}, 1")
    a(f"s_and_b32 s{sWn}, s{sG}, 1")
    a("v_lshrrev_b32 v18, 3, v1")
    a("v_and_b32 v19, 7, v1")
    a("v_lshrrev_b32 v7, 4, v1")
    a("v_xor_b32 v19, v19, v7")
    a(f"s_lshl_b32 s{sT0}, s{sMb}, 2")
    a(f"s_add_u32 s{sT0}, s{sT0}, s{sG}")
    a(f"s_lshl_b32 s{sT0}, s{sT0}, 15")
    a(f"v_lshl_add_u32 v{VO}, v18, 10, s{sT0}")
    a(f"v_lshl_add_u32 v{VO}, v19, 4, v{VO}")
    a(f"v_xor_b32 v{VO+1}, 64, v{VO}")
    a(f"v_add_u32 v{VO+1}, 8192, v{VO+1}")
    a(f"v_add_u32 v{VO+2}, 16384, v{VO}")
    a(f"v_add_u32 v{VO+3}, 16384, v{VO+1}")
    a(f"s_mul_i32 s{sT0}, s{sWn}, {32*2752}")
    a(f"s_mul_i32 s{sT1}, s{sNb}, 192")
    a(f"s_add_u32 s{sT0}, s{sT0}, s{sT1}")
    a(f"s_sub_i32 s{sT1}, 2752, s{sT1}")
    a(f"s_mov_b32 s{sT2}, 0x80000000")
    for i in range(3):
        a(f"v_add_u32 v18, {64*i}, v1")
        a("v_mul_u32_u24 v19, 21846, v18")
        a("v_lshrrev_b32 v19, 18, v19")
        a("v_mul_u32_u24 v7, 12, v19")
        a("v_sub_u32 v18, v18, v7")
        a("v_lshlrev_b32 v18, 4, v18")
        a(f"v_cmp_gt_i32 vcc, s{sT1}, v18")
        a("v_mul_u32_u24 v19, 2752, v19")
        a(f"v_add3_u32 v19, v19, v18, s{sT0}")
        a(f"v_mov_b32 v7, s{sT2}")
        a(f"v_cndmask_b32 v{VO+4+i}, v7, v19, vcc")
        a(f"v_add_u32 v{VO+7+i}, {16*2752}, v{VO+4+i}")
    a(f"s_lshl_b32 s{sMx}, s{sG}, 12")
    a(f"s_mul_i32 s{sMw}, s{sWm}, {L_UP-L_GATE}")
    a(f"s_mul_i32 s{sT0}, s{sWn}, 6144")
    a(f"s_add_u32 s{sMw}, s{sMw}, s{sT0}")
    a(f"s_add_u32 s{sMw}, s{sMw}, {L_GATE}")
    a(f"s_mul_i32 s{sSt}, s{sMb}, {cfg.rotmul_m}")
    a(f"s_mul_i32 s{sT0}, s{sNb}, {cfg.rotmul_n}")
    a(f"s_add_u32 s{sSt}, s{sSt}, s{sT0}")
    a(f"s_cmp_eq_u32 s{sWm}, 0")
    a("s_waitcnt lgkmcnt(0)")
    a(f"s_cselect_b32 s{SW}, s{pWg}, s{pWu}")
    a(f"s_cselect_b32 s{SW+1}, s{pWg+1}, s{pWu+1}")
    a(f"s_mov_b32 s{SW+2}, {512*2752}")
    a(f"s_mov_b32 s{SW+3}, 0x20000")
    a(f"s_mov_b32 s{SX}, s{pX}")
    a(f"s_mov_b32 s{SX+1}, s{pX+1}")
    a(f"s_cmp_eq_u32 s{sNb}, 15")
    a(f"s_cselect_b32 s{SX+2}, 0, {2048*1024}")
    a(f"s_mov_b32 s{SX+3}, 0x20000")
    a("s_barrier")
    def kstage():
        a(f"s_and_b32 s{sSt}, s{sSt}, 7")
        a(f"s_lshl_b32 s{sKx}, s{sSt}, 7")
        a(f"s_mul_i32 s{sKw}, s{sSt}, {64*2752}")
        a(f"s_add_u32 s{sSt}, s{sSt}, 1")
    def dma(i, extra=0):
        if i < 4:
            return [f"s_add_u32 m0, s{sMx}, {1024*i+extra}", f"buffer_load_dwordx4 v{VO+i}, {sr(SX,4)}, s{sKx} offen lds"]
        return [f"s_add_u32 m0, s{sMw}, {1024*(i-4)+extra}", f"buffer_load_dwordx4 v{VO+i}, {sr(SW,4)}, s{sKw} offen lds"]
    a(f"s_mov_b32 s{sIt2}, 0")
    a("L_pro:")
    kstage()
    for i in range(10):
        d = dma(i); a(d[0]); a("s_nop 0"); a(d[1])
    a(f"s_add_u32 s{sMx}, s{sMx}, {SLOT}")
    a(f"s_add_u32 s{sMw}, s{sMw}, {SLOT}")
    a(f"s_add_u32 s{sIt2}, s{sIt2}, 1")
    a(f"s_cmp_lt_u32 s{sIt2}, 2")
    a("s_cbranch_scc1 L_pro")
    stamp(1)
    a("v_and_b32 v18, 31, v1")
    a("v_lshrrev_b32 v19, 5, v1")
    a("v_bfe_u32 v7, v1, 1, 3")
    a("v_xor_b32 v19, v19, v7")
    a(f"s_lshl_b32 s{sT0}, s{sWm}, 13")
    a(f"v_lshl_add_u32 v2, v18, 7, s{sT0}")
    a("v_lshl_add_u32 v2, v19, 4, v2")
    for k in range(1, 4): a(f"v_xor_b32 v{2+k}, {32*k}, v2")
    a("v_bfe_u32 v18, v1, 2, 2")
    a("v_lshrrev_b32 v19, 5, v1")
    a("v_lshl_add_u32 v18, v19, 3, v18")
    a("v_mul_u32_u24 v6, 192, v18")
    a("v_bfe_u32 v18, v1, 4, 1")
    a(f"v_mul_u32_u24 v18, {L_UP-L_GATE}, v18")
    a("v_and_b32 v19, 3, v1")
    a("v_lshl_add_u32 v18, v19, 3, v18")
    a(f"s_mul_i32 s{sT0}, s{sWn}, 96")
    a(f"s_add_u32 s{sT0}, s{sT0}, {L_GATE}")
    a(f"v_add3_u32 v6, v6, v18, s{sT0}")
    a("v_and_b32 v18, 31, v1")
    a("v_cmp_eq_u32 vcc, 0, v18")
    a(f"v_cmp_eq_u32 s[{sT0}:{sT0+1}], 20, v18")
    a("v_mov_b32 v19, 0x3f803f80")
    a(f"s_or_b64 vcc, vcc, s[{sT0}:{sT0+1}]")
    a("s_nop 1")
    a(f"v_cndmask_b32 v{SEL}, 0, v19, vcc")
    for k in range(1, 4): a(f"v_mov_b32 v{SEL+k}, v{SEL}")
    for k in range(12): a(f"v_mov_b32 v{CS+k}, 0")
    for k in range(20): a(f"v_mov_b32 v{F1+k}, 0")
    for k in range(96): a(f"v_mov_b32 v{ACC+k}, 0")
    def reads(F, ks):
        r = []
        r.append(f"ds_read_b64_tr_b16 {vr(F+8,2)}, v6 offset:{ks*3072}")
        r.append(f"ds_read_b64_tr_b16 {vr(F+10,2)}, v6 offset:{ks*3072+768}")
        r.append(f"ds_read_b128 {vr(F,4)}, v{2+ks}")
        r.append(f"ds_read_b128 {vr(F+4,4)}, v{2+ks} offset:4096")
        for uu in (1, 2):
            r.append(f"ds_read_b64_tr_b16 {vr(F+8+4*uu,2)}, v6 offset:{ks*3072+32*uu}")
            r.append(f"ds_read_b64_tr_b16 {vr(F+10+4*uu,2)}, v6 offset:{ks*3072+768+32*uu}")
        return r
    def group(F, fill):
        k = 0
        for uu in range(3):
            for tt in range(2):
                t = ACC + 16 * (tt * 3 + uu)
                a(f"v_mfma_f32_32x32x16_bf16 {vr(t,16)}, {vr(F+8+4*uu,4)}, {vr(F+4*tt,4)}, {vr(t,16)}")
                for x in fill[k]: a(x)
                k += 1
            a(f"v_mfma_f32_16x16x32_bf16 {vr(CS+4*uu,4)}, {vr(SEL,4)}, {vr(F+8+4*uu,4)}, {vr(CS+4*uu,4)}")
            for x in fill[k]: a(x)
            k += 1
    def mkfill(rd, dm):
        f = [[] for _ in range(9)]
        slots = [0, 0, 1, 1, 3, 3, 4, 4]
        for x, s_ in zip(rd, slots): f[s_].append(x)
        ds = [(2, 3), (5, 6), (6, 7)]
        for d, (s0, s1) in zip(dm, ds):
            f[s0].append(d[0]); f[s1].insert(0, d[1])
        return f
    a(f"s_mov_b32 s{sIt2}, 0")
    a(f"s_mov_b32 s50, {-2*SLOT & 0xffffffff}")
    a(f"s_mov_b32 s{sDl}, s50")
    a("L_g1:")
    kstage()
    a("L_g1b:")
    a("s_waitcnt vmcnt(10) lgkmcnt(0)")
    a("s_barrier")
    group(F1, mkfill(reads(F0, 0), [dma(0), dma(1), dma(2)]))
    a("s_waitcnt lgkmcnt(0)")
    group(F0, mkfill(reads(F1, 1), [dma(3), dma(4), dma(5)]))
    a("s_waitcnt lgkmcnt(0)")
    group(F1, mkfill(reads(F0, 2), [dma(6), dma(7)]))
    a("s_waitcnt lgkmcnt(0)")
    f = mkfill(reads(F1, 3), [dma(8), dma(9)])
    f[6] += [f"s_add_u32 s{sMx}, s{sMx}, s{sDl}", f"s_add_u32 s{sMw}, s{sMw}, s{sDl}",
             f"s_cmp_ge_u32 s{sMx}, {2*SLOT}", f"s_cselect_b32 s{sDl}, s50, {SLOT}"]
    f[7] += [f"v_add_u32 v{2+k}, s{sDl}, v{2+k}" for k in range(5)]
    f[8] += [f"s_add_u32 s{sIt2}, s{sIt2}, 1", f"s_cmp_lt_u32 s{sIt2}, 6"]
    group(F0, f)
    a("s_cbranch_scc1 L_g1")
    a(f"s_cmp_eq_u32 s{sIt2}, 8")
    a("s_cbranch_scc1 L_g1e")
    a(f"s_cmp_eq_u32 s{sIt2}, 7")
    a("s_cbranch_scc1 L_g1w")
    a("v_lshrrev_b32 v18, 3, v1")
    a("v_and_b32 v19, 7, v1")
    a("v_bfe_u32 v7, v1, 4, 1")
    a("v_lshlrev_b32 v7, 2, v7")
    a("v_xor_b32 v19, v19, v7")
    a(f"s_mul_i32 s{sT0}, s{sG}, {22*16*1024}")
    a(f"s_lshl_b32 s{sT1}, s{sDb}, 7")
    a(f"s_add_u32 s{sT0}, s{sT0}, s{sT1}")
    a(f"v_lshl_add_u32 v{VO}, v18, 10, s{sT0}")
    a(f"v_lshl_add_u32 v{VO}, v19, 4, v{VO}")
    for i in range(1, 10): a(f"v_add_u32 v{VO+i}, {8192*i}, v{VO}")
    for S in (SX, SW):
        a(f"s_mov_b32 s{S}, s{pWd}")
        a(f"s_mov_b32 s{S+1}, s{pWd+1}")
        a(f"s_mov_b32 s{S+2}, {1376*1024}")
    a(f"s_mov_b32 s{sKx}, {-81920 & 0xffffffff}")
    a("L_g1w:")
    a(f"s_add_u32 s{sKx}, s{sKx}, 81920")
    a(f"s_mov_b32 s{sKw}, s{sKx}")
    a("s_branch L_g1b")
    a("L_g1e:")
    stamp(2)
    a(f"s_add_u32 s{sKx}, s{sKx}, 81920")
    a(f"s_mov_b32 s{sKw}, s{sKx}")
    a("v_and_b32 v18, 31, v1")
    a(f"s_lshl_b32 s{sT0}, s{sWm}, 8")
    a(f"s_add_u32 s{sT0}, s{sT0}, {L_STAT}")
    a(f"v_lshl_add_u32 v18, v18, 2, s{sT0}")
    a("s_waitcnt lgkmcnt(0)")
    a("s_barrier")
    stamp(3)
    TS = 176
    f = [[] for _ in range(9)]
    f[0] = [f"ds_read_b32 v{TS}, v18", f"ds_read_b32 v{TS+1}, v18 offset:128"]
    for k in range(8):
        d = dma(k); f[k].append(d[0]); f[k+1].insert(0, d[1])
    group(F1, f)
    a("s_waitcnt lgkmcnt(0)")
    a(f"s_mov_b32 s{sT0}, 0x01000100")
    for k in range(20): a(f"v_mov_b32 v{F0+k}, 0")
    for tt in range(2):
        a(f"v_perm_b32 v{F0+4*tt}, v{TS+tt}, v{TS+tt}, s{sT0}")
        a(f"v_xor_b32 v{F0+4*tt}, 0x80008000, v{F0+4*tt}")
        a(f"v_and_b32 v{TS+tt}, 0xffff0000, v{TS+tt}")
        a(f"v_rcp_f32 v{TS+2+tt}, v{TS+tt}")
    for uu in range(3):
        a(f"v_cvt_pk_bf16_f32 v{TS+4}, v{CS+4*uu}, v{CS+4*uu}")
        a(f"v_and_b32 v{TS+4}, 0xffff0000, v{TS+4}")
        a(f"v_sub_f32 v{TS+5}, v{CS+4*uu}, v{TS+4}")
        a(f"v_cvt_pk_bf16_f32 v{F0+8+4*uu}, v{TS+4}, v{TS+5}")
    for tt in range(2): a(f"v_mul_f32 v{TS+2+tt}, {fl(-LOG2E)}, v{TS+2+tt}")
    a(f"s_mov_b32 s{SH}, s{pWs}")
    a(f"s_mov_b32 s{SH+1}, s{pWs+1}")
    a(f"s_mov_b32 s{SH+2}, {H_BYTES}")
    a(f"s_mov_b32 s{SH+3}, 0x20000")
    for uu in range(3):
        for tt in range(2):
            t = ACC + 16 * (tt * 3 + uu)
            a(f"v_mfma_f32_32x32x16_bf16 {vr(t,16)}, {vr(F0+8+4*uu,4)}, {vr(F0+4*tt,4)}, {vr(t,16)}")
    a(f"s_lshl_b32 s{sT0}, s{sNb}, 1")
    a(f"s_add_u32 s{sT0}, s{sT0}, s{sWn}")
    a(f"s_mul_i32 s{sT0}, s{sT0}, {3*65536}")
    a(f"s_lshl_b32 s{sT1}, s{sMb}, 1")
    a(f"s_add_u32 s{sT1}, s{sT1}, s{sWm}")
    a(f"s_lshl_b32 s{sT1}, s{sT1}, 11")
    a(f"s_add_u32 s{sT0}, s{sT0}, s{sT1}")
    a(f"v_lshl_add_u32 v7, v1, 4, s{sT0}")
    HT = 184
    n = 0
    for uu in range(3):
        a(f"s_mov_b32 s{sT0}, {uu*65536}")
        for tt in range(2):
            t = ACC + 16 * (tt * 3 + uu)
            for k in range(8): a(f"v_mul_f32 v{t+k}, v{t+k}, v{TS+2+tt}")
            for k in range(8): a(f"v_exp_f32 v{t+k}, v{t+k}")
            for k in range(8): a(f"v_fma_f32 v{t+k}, v{t+k}, v{TS+tt}, v{TS+tt}")
            for k in range(8): a(f"v_rcp_f32 v{t+k}, v{t+k}")
            for k in range(8): a(f"v_mul_f32 v{t+k}, v{t+k}, v{t+8+k}")
            h = HT + 4 * n
            for k in range(4): a(f"v_cvt_pk_bf16_f32 v{h+k}, v{t+2*k}, v{t+2*k+1}")
            a(f"buffer_store_dwordx4 {vr(h,4)}, v7, {sr(SH,4)}, s{sT0} offen offset:{1024*tt} sc1")
            n += 1
    stamp(4)
    ACC2, WR, HB, WT = 80, 144, 208, 36
    NHB = 6
    def wloc(i):
        if i >= 14: i -= 14
        sl = (2, 0, 1)[i // 5]; r = i % 5
        return (sl, 0, r * 2048) if r < 2 else (sl, 1, (r - 2) * 2048)
    a("v_bfe_u32 v18, v1, 2, 2")
    a("v_lshrrev_b32 v19, 5, v1")
    a("v_lshl_add_u32 v19, v19, 2, v18")
    a("v_lshlrev_b32 v19, 7, v19")
    a("v_lshrrev_b32 v18, 1, v18")
    a("v_lshl_add_u32 v19, v18, 6, v19")
    a("v_bfe_u32 v18, v1, 4, 1")
    a("v_lshl_add_u32 v19, v18, 5, v19")
    a("v_and_b32 v18, 3, v1")
    a("v_lshl_add_u32 v19, v18, 3, v19")
    a(f"s_sub_u32 s{sMx}, s{sMx}, {SLOT}")
    a(f"s_sub_u32 s{sMw}, s{sMw}, {SLOT}")
    a("v_xor_b32 v18, 64, v19")
    a(f"v_add_u32 v20, s{sMx}, v19")
    a(f"v_add_u32 v21, s{sMx}, v18")
    a(f"v_add_u32 v22, s{sMw}, v19")
    a(f"v_add_u32 v23, s{sMw}, v18")
    for k in range(4): a(f"v_add_u32 v{24+k}, {2*SLOT}, v{20+k}")
    def wread(i, dst):
        sl, pc, off = wloc(i)
        out = []
        for dt in range(2):
            b = 20 + 2 * pc + dt + (4 if sl == 2 else 0)
            o = off + (SLOT if sl == 1 else 0)
            out.append(f"ds_read_b64_tr_b16 {vr(dst+4*dt,2)}, v{b} offset:{o}")
            out.append(f"ds_read_b64_tr_b16 {vr(dst+4*dt+2,2)}, v{b} offset:{o+1024}")
        return out
    a("s_waitcnt vmcnt(14)")
    a("s_nop 0")
    for i in range(8):
        for x in wread(i, WR + 8 * i): a(x)
        if i % 2 == 1: a("s_waitcnt lgkmcnt(7)")
    for k in range(64): a(f"v_mov_b32 v{ACC2+k}, 0")
    a("s_waitcnt lgkmcnt(0)")
    a(f"s_mov_b32 s{sKx}, {14*16384}")
    for i in range(14, 22):
        sl, pc, off = wloc(i)
        for hh in range(2):
            a(f"s_add_u32 m0, s{sMw if pc else sMx}, {sl*SLOT + off + 1024*hh}")
            k = 2 * (i - 14) + hh
            if k == 10: a(f"s_mov_b32 s{sKx}, {19*16384}")
            else: a("s_nop 0")
            a(f"buffer_load_dwordx4 v{VO + k % 10}, {sr(SX,4)}, s{sKx} offen lds")
    a(f"s_lshl_b32 s{sT0}, s{sMb}, 7")
    a(f"s_add_u32 s{sT0}, s{sT0}, {WS_F2}")
    a(f"v_mov_b32 v18, s{sT0}")
    a("v_mov_b32 v19, 1")
    a(f"s_lshr_b32 s{sT0}, s{sTb}, 1")
    a(f"s_lshl_b32 s{sT0}, s{sT0}, 7")
    a(f"s_add_u32 s{sT0}, s{sT0}, {WS_F2}")
    a(f"v_mov_b32 v28, s{sT0}")
    a("s_waitcnt vmcnt(16)")
    a("s_mov_b64 exec, 1")
    a(f"global_atomic_add v18, v19, s[{pWs}:{pWs+1}] sc1")
    a("s_mov_b64 exec, -1")
    stamp(5)
    xload(a, pX, sTb, sDb, sWave, sT0, sT1)
    a(f"s_mul_i32 s{sT0}, s{sG}, {22*65536}")
    a(f"s_lshl_b32 s{sT1}, s{sTb}, 11")
    a(f"s_add_u32 s{sT0}, s{sT0}, s{sT1}")
    a(f"v_lshl_add_u32 v7, v1, 4, s{sT0}")
    a(f"s_mov_b32 s{sT1}, 0x20000")
    a("L_p2:")
    a(f"global_load_dword v29, v28, s[{pWs}:{pWs+1}] sc1")
    a(f"s_sub_u32 s{sT1}, s{sT1}, 1")
    a("s_waitcnt vmcnt(0)")
    a("v_cmp_gt_u32 vcc, 64, v29")
    a(f"s_cmp_eq_u32 s{sT1}, 0")
    a("s_cbranch_scc1 L_p2_d")
    a("s_cbranch_vccz L_p2_d")
    a("s_sleep 2")
    a("s_branch L_p2")
    a("L_p2_d:")
    stamp(6)
    def hload(i):
        b = HB + 8 * (i % NHB)
        return [f"s_mov_b32 s{sT0}, {i*65536}",
                f"buffer_load_dwordx4 {vr(b,4)}, v7, {sr(SH,4)}, s{sT0} offen sc1",
                f"buffer_load_dwordx4 {vr(b+4,4)}, v7, {sr(SH,4)}, s{sT0} offen offset:1024 sc1"]
    for i in range(NHB):
        for x in hload(i): a(x)
    for i in range(22):
        b = HB + 8 * (i % NHB)
        w = WR + 8 * i if i < 8 else WT + 8 * (i % 2)
        nxt = wread(i + 1, WT + 8 * ((i + 1) % 2)) if 8 <= i + 1 < 22 else []
        outst = 2 * (min(22, i + NHB) - i - 1)
        a(f"s_waitcnt vmcnt({outst})" + (" lgkmcnt(0)" if i >= 8 else ""))
        k = 0
        for tt in range(2):
            for dt in range(2):
                t = ACC2 + 16 * (dt * 2 + tt)
                a(f"v_mfma_f32_32x32x16_bf16 {vr(t,16)}, {vr(w+4*dt,4)}, {vr(b+4*tt,4)}, {vr(t,16)}")
                if k < 2:
                    for x in nxt[2*k:2*k+2]: a(x)
                k += 1
        if i + NHB < 22:
            for x in hload(i + NHB): a(x)
    stamp(7)
    a("v_lshrrev_b32 v19, 5, v1")
    a("v_and_b32 v18, 15, v1")
    a("v_xor_b32 v19, v19, v18")
    a("v_lshlrev_b32 v18, 8, v18")
    a("v_lshl_add_u32 v18, v19, 4, v18")
    a("v_bfe_u32 v19, v1, 4, 1")
    a(f"v_mul_u32_u24 v19, {SLOT}, v19")
    for k in range(8):
        a(f"v_xor_b32 v28, {32*k}, v18")
        a(f"v_add3_u32 v{36+k}, v28, v19, s{sMx}")
        a(f"v_add3_u32 v{44+k}, v28, v19, s{sMw}")
    for dt in range(2):
        for g in range(4):
            for tt in range(2):
                t = ACC2 + 16 * (dt * 2 + tt) + 4 * g
                a(f"ds_write_b128 v{36 + 8*tt + dt*4 + g}, {vr(t,4)}")

    a("L_fin:")
    a("v_and_b32 v16, 15, v1")
    a("v_lshrrev_b32 v17, 4, v1")
    a(f"s_and_b32 s{sT0}, s{sWave}, 3")
    a(f"s_lshr_b32 s{sT1}, s{sWave}, 2")
    a(f"s_lshl_b32 s{sT2}, s{sT1}, 3")
    a(f"v_lshl_add_u32 v18, v17, 1, s{sT2}")
    a("v_xor_b32 v18, v18, v16")
    a("v_lshlrev_b32 v19, 8, v16")
    a("v_lshl_add_u32 v18, v18, 4, v19")
    a("v_xor_b32 v19, 16, v18")
    a(f"s_and_b32 s{sT2}, s{sWave}, 1")
    a(f"s_mul_i32 s{sT2}, s{sT2}, {SLOT}")
    a(f"s_bitcmp1_b32 s{sWave}, 1")
    a(f"s_cselect_b32 s{sT3}, {L_GATE}, 0")
    a(f"s_cselect_b32 s48, 2048, 0")
    a(f"s_cselect_b32 s49, {L_UP - L_GATE - 8192}, 0")
    a(f"s_add_u32 s{sT2}, s{sT2}, s{sT3}")
    a(f"v_add_u32 v20, s{sT2}, v18")
    a(f"v_add_u32 v21, s{sT2}, v19")
    a("v_add_u32 v22, s48, v20")
    a("v_add_u32 v23, s48, v21")
    a("v_add_u32 v24, s49, v20")
    a("v_add_u32 v25, s49, v21")
    a("v_add_u32 v26, s49, v22")
    a("v_add_u32 v27, s49, v23")
    a("v_bfe_u32 v28, v1, 2, 2")
    a("v_lshl_add_u32 v28, v17, 3, v28")
    a(f"v_mul_u32_u24 v28, {S_PITCH}, v28")
    a("v_and_b32 v29, 3, v1")
    a("v_lshl_add_u32 v28, v29, 3, v28")
    a(f"s_mul_i32 s{sT2}, s{sT1}, {EO_CH}")
    a(f"s_lshl_b32 s{sT3}, s{sT0}, 5")
    a(f"s_add_u32 s{sT2}, s{sT2}, s{sT3}")
    a(f"s_add_u32 s{sT2}, s{sT2}, {L_EO}")
    a(f"v_add_u32 v28, s{sT2}, v28")
    a("s_waitcnt lgkmcnt(0)")
    a("s_barrier")
    stamp(9)
    R = 32
    for g in range(4):
        a(f"ds_read_b128 {vr(R+8*g,4)}, v{20+2*g} offset:{4096*g}")
        a(f"ds_read_b128 {vr(R+8*g+4,4)}, v{21+2*g} offset:{4096*g}")
    a("ds_read_b64_tr_b16 v[64:65], v28")
    a(f"ds_read_b64_tr_b16 v[66:67], v28 offset:{4*S_PITCH}")
    a("s_waitcnt lgkmcnt(6)")
    for k in range(4): a(f"v_pk_add_f32 {vr(R+2*k,2)}, {vr(R+2*k,2)}, {vr(R+8+2*k,2)}")
    a("s_waitcnt lgkmcnt(2)")
    for k in range(4): a(f"v_pk_add_f32 {vr(R+16+2*k,2)}, {vr(R+16+2*k,2)}, {vr(R+24+2*k,2)}")
    for k in range(4): a(f"v_pk_add_f32 {vr(R+2*k,2)}, {vr(R+2*k,2)}, {vr(R+16+2*k,2)}")
    for k in range(8): a(f"v_mul_f32 v{R+8+k}, {fl(-LOG2E)}, v{R+k}")
    for k in range(8): a(f"v_exp_f32 v{R+8+k}, v{R+8+k}")
    a("s_waitcnt lgkmcnt(0) vmcnt(0)")
    for k in range(4):
        a(f"v_lshlrev_b32 v{R+16+2*k}, 16, v{64+k}")
        a(f"v_and_b32 v{R+17+2*k}, 0xffff0000, v{64+k}")
    for k in range(8): a(f"v_add_f32 v{R+8+k}, 1.0, v{R+8+k}")
    for k in range(8): a(f"v_rcp_f32 v{R+8+k}, v{R+8+k}")
    for k in range(4): a(f"v_pk_mul_f32 {vr(R+2*k,2)}, {vr(R+2*k,2)}, {vr(R+16+2*k,2)}")
    for k in range(4):
        a(f"v_lshlrev_b32 v{R+24+2*k}, 16, v{XR+k}")
        a(f"v_and_b32 v{R+25+2*k}, 0xffff0000, v{XR+k}")
    for k in range(4): a(f"v_pk_fma_f32 {vr(R+2*k,2)}, {vr(R+2*k,2)}, {vr(R+8+2*k,2)}, {vr(R+24+2*k,2)}")
    for k in range(4): a(f"v_cvt_pk_bf16_f32 v{R+8+k}, v{R+2*k}, v{R+2*k+1}")
    a(f"global_store_dwordx4 v{XA}, {vr(R+8,4)}, s[{pOut}:{pOut+1}]")
    if cfg.stamps:
        a("s_waitcnt vmcnt(0)")
        stamp(10)
        a("s_waitcnt lgkmcnt(0)")
        a(f"s_and_b32 s{sT0}, s{sWave}, 3")
        a(f"s_cmp_lg_u32 s{sT0}, 0")
        a("s_cbranch_scc1 L_exit")
        a(f"s_lshr_b32 s{sT0}, s{sWave}, 2")
        a(f"s_lshl_b32 s{sT0}, s{sT0}, 8")
        a(f"s_add_u32 s{sT0}, s{sT0}, s2")
        a(f"s_lshl_b32 s{sT0}, s{sT0}, 7")
        a(f"s_add_u32 s{sT0}, s{sT0}, {STAMP_OFF}")
        a(f"v_mov_b32 v3, s{sT0}")
        a("s_mov_b64 exec, 1")
        for j in range(11):
            a(f"v_mov_b32 v4, s{70+2*j}")
            a(f"v_mov_b32 v5, s{71+2*j}")
            a(f"global_store_dwordx2 v3, v[4:5], s[{pWs}:{pWs+1}] offset:{j*8}")
    a("L_exit:")
    return a.text()

S_PITCH = 144
XR, XA = 72, 76

def xload(a, pX, sTb, sDb, sWave, sT0, sT1):
    a(f"s_and_b32 s{sT0}, s{sWave}, 3")
    a(f"s_lshl_b32 s{sT0}, s{sT0}, 14")
    a(f"s_lshl_b32 s{sT1}, s{sTb}, 16")
    a(f"s_add_u32 s{sT0}, s{sT0}, s{sT1}")
    a(f"s_lshl_b32 s{sT1}, s{sDb}, 7")
    a(f"s_add_u32 s{sT0}, s{sT0}, s{sT1}")
    a(f"s_lshr_b32 s{sT1}, s{sWave}, 2")
    a(f"s_lshl_b32 s{sT1}, s{sT1}, 6")
    a(f"s_add_u32 s{sT0}, s{sT0}, s{sT1}")
    a(f"v_and_b32 v{XA}, 15, v1")
    a(f"v_lshl_add_u32 v{XA}, v{XA}, 10, s{sT0}")
    a(f"v_and_b32 v{XR}, 48, v1")
    a(f"v_add_u32 v{XA}, v{XA}, v{XR}")
    a(f"global_load_dwordx4 v[{XR}:{XR+3}], v{XA}, s[{pX}:{pX+1}]")

HEADER = open("cdna_kernels/" + NAME + ".s.ref").read().split("; Override launch")[0]

def wrap(body):
    return HEADER + f"""; @launch grid=(256,1,1) block=(512,1,1) lds=163840
.amdgcn_target "amdgcn-amd-amdhsa--gfx950"
.text
.globl {NAME}_kernel
.p2align 8
.type {NAME}_kernel,@function
{NAME}_kernel:
{body}    s_endpgm
.section .rodata,"a"
.p2align 6
.amdhsa_kernel {NAME}_kernel
  .amdhsa_next_free_vgpr 256
  .amdhsa_next_free_sgpr 102
  .amdhsa_accum_offset 256
  .amdhsa_group_segment_fixed_size 0
  .amdhsa_kernarg_size 128
  .amdhsa_user_sgpr_count 2
  .amdhsa_user_sgpr_kernarg_segment_ptr 1
  .amdhsa_system_sgpr_workgroup_id_x 1
.end_amdhsa_kernel
"""

if __name__ == "__main__":
    cfg = Cfg()
    out = sys.argv[1]
    for kv in sys.argv[2:]:
        k, v = kv.split("=")
        setattr(cfg, k, type(getattr(cfg, k))(int(v)) if not isinstance(getattr(cfg, k), str) else v)
    open(out, "w").write(wrap(gen(cfg)))
```
